```python
import torch

def _softmax(x, axis=-1):
    return torch.softmax(x, dim=axis)
def _gelu(x):
    return torch.nn.functional.gelu(x, approximate="tanh")
def _silu(x):
    return torch.nn.functional.silu(x)
def _sigmoid(x):
    return torch.sigmoid(x)
def _layernorm(x, axis=-1, eps=1e-5):
    m = x.mean(dim=axis, keepdim=True)
    v = x.var(dim=axis, keepdim=True, unbiased=False)
    return (x - m) / torch.sqrt(v + eps)
def _scatter_add(tgt, idx, src, axis=0):
    return tgt.clone().index_add_(axis, idx, src)
def _segment_sum(src, seg, n):
    out = torch.zeros((n,) + src.shape[1:], dtype=src.dtype)
    return out.index_add_(0, seg, src)
def _pad(x, pw):
    flat = tuple(v for pair in reversed(pw) for v in pair)
    return torch.nn.functional.pad(x, flat)

kernel_name = 'sequential_preLN__linear_kernel_hedgehog__moe_arch_mod__prompt'

def setup_inputs():

    _w = (lambda a: (lambda t: t.to(torch.bfloat16) if t.is_floating_point() else t)(torch.as_tensor(a)))
    def _A_setup():
        B, S, D, H = 1, 2048, 1024, 32
        Dh = D // H
        return {
            "x": _w((lambda *s: torch.randn(*s, dtype=torch.bfloat16) * 0.05)(B, S, D)),
            "wqkv": _w((lambda *s: torch.randn(*s, dtype=torch.bfloat16) * 0.2)(D, 3 * D)),
            "w_phi": _w((lambda *s: torch.randn(*s, dtype=torch.bfloat16) * 0.2)(H, Dh, Dh) * (Dh ** -0.5)),
            "wo": _w((lambda *s: torch.randn(*s, dtype=torch.bfloat16) * 0.05)(D, D)),
        }
    _A_in = _A_setup()

    def _B_setup():
        B, S, D, F, C = 1, 2048, 1024, 3584, 1
        return {
            "x": _w((lambda *s: torch.randn(*s, dtype=torch.bfloat16) * 0.05)(B, S, D)),
            "w_r": _w((lambda *s: torch.randn(*s, dtype=torch.bfloat16) * 0.1)(D)),
            "w_gate": _w((lambda *s: torch.randn(*s, dtype=torch.bfloat16) * 0.05)(D, F)),
            "w_up": _w((lambda *s: torch.randn(*s, dtype=torch.bfloat16) * 0.05)(D, F)),
            "w_down": _w((lambda *s: torch.randn(*s, dtype=torch.bfloat16) * 0.05)(F, D)),
        }
    _B_in = _B_setup()

    return {
        "A_x": _A_in["x"],
        "A_wqkv": _A_in["wqkv"],
        "A_w_phi": _A_in["w_phi"],
        "A_wo": _A_in["wo"],
        "B_x": _B_in["x"],
        "B_w_r": _B_in["w_r"],
        "B_w_gate": _B_in["w_gate"],
        "B_w_up": _B_in["w_up"],
        "B_w_down": _B_in["w_down"],
    }

def reference(A_x, A_wqkv, A_w_phi, A_wo, B_x, B_w_r, B_w_gate, B_w_up, B_w_down):
    def _A_ref(x, wqkv, w_phi, wo):
        B, S, D = x.shape
        H = 32; Dh = D // H
        qkv = (lambda x, *d: x.permute(*d))((x @ wqkv).reshape(B, S, 3, H, Dh), 2, 0, 3, 1, 4)
        q, k, v = qkv[0], qkv[1], qkv[2]
        pq = torch.einsum("bhsd,hdf->bhsf", q, w_phi)
        pk = torch.einsum("bhsd,hdf->bhsf", k, w_phi)
        phi_q = torch.concatenate([_softmax(pq, axis=-1), _softmax(-pq, axis=-1)], axis=-1)
        phi_k = torch.concatenate([_softmax(pk, axis=-1), _softmax(-pk, axis=-1)], axis=-1)
        kv = torch.einsum("bhsf,bhsd->bhfd", phi_k, v)
        z  = torch.einsum("bhsf->bhf", phi_k)
        num = torch.einsum("bhqf,bhfd->bhqd", phi_q, kv)
        den = torch.einsum("bhqf,bhf->bhq", phi_q, z)[..., None] + 1e-6
        o = num / den
        return (lambda x, *d: x.permute(*d))(o, 0, 2, 1, 3).reshape(B, S, D) @ wo

    def _B_ref(x, w_r, w_gate, w_up, w_down):
        B, S, D = x.shape
        C = 1
        r = x @ w_r
        idx = torch.argsort(-r, axis=-1)[:, :C]
        idx_e = (lambda x, n, axis: torch.repeat_interleave(x, n, dim=axis))(idx.reshape(B, C, 1), D, axis=2)
        x_sel = (lambda x, i, axis: torch.take_along_dim(x, i, dim=axis))(x, idx_e, axis=1)
        g = _silu(x_sel @ w_gate)
        u = x_sel @ w_up
        y = (g * u) @ w_down
        r_sel = _sigmoid((lambda x, i, axis: torch.take_along_dim(x, i, dim=axis))(r, idx, axis=1))
        y = y * r_sel.reshape(B, C, 1)
        b_off = (torch.arange(B) * S).reshape(B, 1)
        flat_idx = (idx + b_off).reshape(B * C)
        zero = (x * 0.0).reshape(B * S, D)
        upd = _scatter_add(zero, flat_idx, y.reshape(B * C, D), axis=0)
        return x + upd.reshape(B, S, D)

    x = A_x
    h = x + _A_ref(_layernorm(x, axis=-1), A_wqkv, A_w_phi, A_wo)
    h2 = h + _B_ref(_layernorm(h, axis=-1), B_w_r, B_w_gate, B_w_up, B_w_down)
    return h2
```

```python
KNAME = "sequential_preLN__linear_kernel_hedgehog__moe_arch_mod__prompt_kernel"

class A:
    def __init__(self):
        self.lines = []
        self.nl = 0
    def __call__(self, s=""):
        for l in s.split("\n"):
            self.lines.append("    " + l.strip() if l.strip() and not l.strip().endswith(":") else l.strip())
    def label(self, base="L"):
        self.nl += 1
        return f"{base}_{self.nl}"
    def text(self):
        return "\n".join(self.lines) + "\n"
    def srd(self, s, base, nbytes):
        self(f"s_mov_b32 s{s}, s{base}")
        self(f"s_and_b32 s{s+1}, s{base+1}, 0xffff")
        self(f"s_mov_b32 s{s+2}, {nbytes:#x}")
        self(f"s_mov_b32 s{s+3}, 0x20000")

def header(launches):
    out = []
    for (k, g, b, lds) in launches:
        if k is None:
            out.append(f"; @launch grid=({g},1,1) block=({b},1,1) lds={lds}")
        else:
            out.append(f"; @launch kernel={k} grid=({g},1,1) block=({b},1,1) lds={lds}")
    out.append('.amdgcn_target "amdgcn-amd-amdhsa--gfx950"')
    out.append(".text")
    return "\n".join(out) + "\n"

def kstart(name):
    return f".globl {name}\n.p2align 8\n.type {name},@function\n{name}:\n"

def kdesc(name, vgpr, accum, sgpr=102):
    return f""".section .rodata,"a"
.p2align 6
.amdhsa_kernel {name}
  .amdhsa_next_free_vgpr {vgpr}
  .amdhsa_next_free_sgpr {sgpr}
  .amdhsa_accum_offset {accum}
  .amdhsa_group_segment_fixed_size 0
  .amdhsa_kernarg_size 96
  .amdhsa_user_sgpr_count 2
  .amdhsa_user_sgpr_kernarg_segment_ptr 1
  .amdhsa_system_sgpr_workgroup_id_x 1
  .amdhsa_float_denorm_mode_32 3
.end_amdhsa_kernel
"""
```

```python
import sys
from asmlib import *
OPS = {
 "add": lambda i: f"v_add_f32 v{8+i%16}, v1, v2",
 "fma": lambda i: f"v_fma_f32 v{8+i%16}, v1, v2, v3",
 "fmac": lambda i: f"v_fmac_f32 v{8+i%16}, v1, v2",
 "mul": lambda i: f"v_mul_f32 v{8+i%16}, v1, v{24+i%8}",
 "pkmul": lambda i: f"v_pk_mul_f32 v[{8+2*(i%8)}:{9+2*(i%8)}], v[2:3], v[4:5]",
 "pkfma": lambda i: f"v_pk_fma_f32 v[{8+2*(i%8)}:{9+2*(i%8)}], v[2:3], v[4:5], v[6:7]",
 "exp": lambda i: f"v_exp_f32 v{8+i%16}, v1",
 "cvtpk": lambda i: f"v_cvt_pk_bf16_f32 v{8+i%16}, v1, v2",
 "max3": lambda i: f"v_max3_f32 v{8+i%16}, v1, v2, v3",
 "max": lambda i: f"v_max_f32 v{8+i%16}, v1, v2",
 "dot2c": lambda i: f"v_dot2c_f32_bf16 v{8+i%16}, v1, v2",
 "dot2": lambda i: f"v_dot2_f32_bf16 v{8+i%16}, v1, v2, v{8+i%16}",
 "lshl": lambda i: f"v_lshlrev_b32 v{8+i%16}, 16, v2",
 "expmix": lambda i: f"v_exp_f32 v{8+i%16}, v1" if i % 2 == 0 else f"v_add_f32 v{8+i%16}, v1, v2",
}
def gen(op, mode):
    nw = 4 if mode == "4" else 8
    a = A()
    a("s_cmp_ge_u32 s2, 256\ns_cbranch_scc1 L_end")
    a("s_load_dwordx2 s[16:17], s[0:1], 88")
    a("s_memrealtime s[46:47]")
    a("v_lshrrev_b32 v1, 6, v0\ns_nop 0\nv_readfirstlane_b32 s20, v1")
    a("s_waitcnt lgkmcnt(0)")
    a.srd(12, 16, 268435456)
    for r in range(1, 128):
        a(f"v_mov_b32 v{r}, 0")
    a("s_mov_b32 s21, 0")
    a("s_barrier")
    a("s_memtime s[40:41]")
    if mode in "mM":
        a("s_cmp_lt_u32 s20, 4")
        a("s_cbranch_scc1 L_mf" if mode == "m" else "s_cbranch_scc0 L_mf")
    a(".p2align 3\nL_loop:")
    for i in range(256):
        a(OPS[op](i))
    a("s_add_u32 s21, s21, 1\ns_cmp_lt_u32 s21, 16\ns_cbranch_scc1 L_loop")
    a("s_branch L_done")
    a(".p2align 3\nL_mf:")
    for i in range(32):
        d = 32 + 16 * (i % 4)
        a(f"v_mfma_f32_32x32x16_bf16 v[{d}:{d+15}], v[4:7], v[8:11], v[{d}:{d+15}]")
    a("s_add_u32 s21, s21, 1\ns_cmp_lt_u32 s21, 16\ns_cbranch_scc1 L_mf")
    a("L_done:")
    a("s_memtime s[42:43]")
    a("s_barrier")
    a("s_memtime s[44:45]")
    a("s_memrealtime s[48:49]")
    a("s_waitcnt lgkmcnt(0) vmcnt(0)")
    a("s_lshl_b32 s30, s2, 3\ns_add_u32 s30, s30, s20\ns_lshl_b32 s30, s30, 6")
    a("s_sub_u32 s42, s42, s40\ns_sub_u32 s44, s44, s40")
    a("v_mov_b32 v4, s42\nv_mov_b32 v5, s44\nv_mov_b32 v6, s46\nv_mov_b32 v7, s48\nv_mov_b32 v3, 0")
    a("buffer_store_dwordx4 v[4:7], v3, s[12:15], s30 offen")
    a("L_end:\ns_endpgm")
    return header([(None, 256, nw*64, 131072)]) + kstart(KNAME) + a.text() + kdesc(KNAME, 256, 256)
if __name__ == "__main__":
    for op in OPS:
        for mode in "48mM":
            open(f"mb4_{op}_{mode}.s", "w").write(gen(op, mode))
```

```python
from asmlib import *
from mb4 import OPS
def gen(opa, opb):
    a = A()
    a("s_cmp_ge_u32 s2, 256\ns_cbranch_scc1 L_end")
    a("s_load_dwordx2 s[16:17], s[0:1], 88")
    a("v_lshrrev_b32 v1, 6, v0\ns_nop 0\nv_readfirstlane_b32 s20, v1")
    a("s_waitcnt lgkmcnt(0)")
    a.srd(12, 16, 268435456)
    for r in range(1, 64): a(f"v_mov_b32 v{r}, 0")
    a("s_mov_b32 s21, 0\ns_barrier\ns_memtime s[40:41]\ns_cmp_lt_u32 s20, 4\ns_cbranch_scc1 L_b")
    for nm, op in (("a", opa), ("b", opb)):
        a(f".p2align 3\nL_{nm}:")
        for i in range(256): a(OPS[op](i))
        a(f"s_add_u32 s21, s21, 1\ns_cmp_lt_u32 s21, 16\ns_cbranch_scc1 L_{nm}\ns_branch L_done")
    a("L_done:\ns_memtime s[42:43]\ns_waitcnt lgkmcnt(0)")
    a("s_lshl_b32 s30, s2, 3\ns_add_u32 s30, s30, s20\ns_lshl_b32 s30, s30, 6\ns_sub_u32 s42, s42, s40")
    a("v_mov_b32 v4, s42\nv_mov_b32 v3, 0\nbuffer_store_dword v4, v3, s[12:15], s30 offen")
    a("L_end:\ns_endpgm")
    return header([(None, 256, 512, 131072)]) + kstart(KNAME) + a.text() + kdesc(KNAME, 256, 256)
CFG = [("fma", "exp"), ("exp", "fma"), ("cvtpk", "exp"), ("exp", "cvtpk"), ("fma", "cvtpk"), ("cvtpk", "fma"), ("fma", "max3"), ("pkfma", "exp"), ("exp", "pkfma"), ("pkfma", "cvtpk"), ("fma", "pkfma"), ("max3", "exp")]
if __name__ == "__main__":
    for c in CFG: open("mb16_%s_%s.s" % c, "w").write(gen(*c))
```
